```python
import torch

def _softmax(x, axis=-1):
    return torch.softmax(x, dim=axis)
def _gelu(x):
    return torch.nn.functional.gelu(x, approximate="tanh")
def _silu(x):
    return torch.nn.functional.silu(x)
def _sigmoid(x):
    return torch.sigmoid(x)
def _layernorm(x, axis=-1, eps=1e-5):
    m = x.mean(dim=axis, keepdim=True)
    v = x.var(dim=axis, keepdim=True, unbiased=False)
    return (x - m) / torch.sqrt(v + eps)
def _scatter_add(tgt, idx, src, axis=0):
    return tgt.clone().index_add_(axis, idx, src)
def _segment_sum(src, seg, n):
    out = torch.zeros((n,) + src.shape[1:], dtype=src.dtype)
    return out.index_add_(0, seg, src)
def _pad(x, pw):
    flat = tuple(v for pair in reversed(pw) for v in pair)
    return torch.nn.functional.pad(x, flat)

kernel_name = 'sequential_preLN__sliding_block__glu_gated_glu__prompt'

def setup_inputs():

    _w = (lambda a: (lambda t: t.to(torch.bfloat16) if t.is_floating_point() else t)(torch.as_tensor(a)))
    def _A_setup():
        B, S, D = 1, 2048, 512
        return {
            "x": _w((lambda *s: torch.randn(*s, dtype=torch.bfloat16) * 0.05)(B, S, D)),
            "wqkv": _w((lambda *s: torch.randn(*s, dtype=torch.bfloat16) * 0.05)(D, 3 * D)),
            "wo": _w((lambda *s: torch.randn(*s, dtype=torch.bfloat16) * 0.05)(D, D)),
        }
    _A_in = _A_setup()

    def _B_setup():
        B, S, D, F = 1, 2048, 512, 1792
        return {
            "x": _w((lambda *s: torch.randn(*s, dtype=torch.bfloat16) * 0.05)(B, S, D)),
            "w_gate": _w((lambda *s: torch.randn(*s, dtype=torch.bfloat16) * 0.05)(D, F)),
            "w_up": _w((lambda *s: torch.randn(*s, dtype=torch.bfloat16) * 0.05)(D, F)),
            "w_down": _w((lambda *s: torch.randn(*s, dtype=torch.bfloat16) * 0.05)(F, D)),
        }
    _B_in = _B_setup()

    return {
        "A_x": _A_in["x"],
        "A_wqkv": _A_in["wqkv"],
        "A_wo": _A_in["wo"],
        "B_x": _B_in["x"],
        "B_w_gate": _B_in["w_gate"],
        "B_w_up": _B_in["w_up"],
        "B_w_down": _B_in["w_down"],
    }

def reference(A_x, A_wqkv, A_wo, B_x, B_w_gate, B_w_up, B_w_down):
    def _A_ref(x, wqkv, wo):
        B, S, D = x.shape
        H = 32; Dh = D // H; W = 256
        qkv = (lambda x, *d: x.permute(*d))((x @ wqkv).reshape(B, S, 3, H, Dh), 2, 0, 3, 1, 4)
        q, k, v = qkv[0], qkv[1], qkv[2]
        scores = torch.einsum("bhqd,bhkd->bhqk", q, k) * (Dh ** -0.5)
        idx = torch.arange(S)
        mask = (idx[:, None] - idx[None, :] >= 0) & (idx[:, None] - idx[None, :] < W)
        scores = torch.where(mask[None, None], scores, -1e9)
        p = _softmax(scores, axis=-1)
        o = torch.einsum("bhqk,bhkd->bhqd", p, v)
        return (lambda x, *d: x.permute(*d))(o, 0, 2, 1, 3).reshape(B, S, D) @ wo

    def _B_ref(x, w_gate, w_up, w_down):
        g = torch.einsum("bsd,df->bsf", x, w_gate)
        u = torch.einsum("bsd,df->bsf", x, w_up)
        h = _sigmoid(g) * u
        return torch.einsum("bsf,fd->bsd", h, w_down)

    x = A_x
    h = x + _A_ref(_layernorm(x, axis=-1), A_wqkv, A_wo)
    h2 = h + _B_ref(_layernorm(h, axis=-1), B_w_gate, B_w_up, B_w_down)
    return h2
```

```python
import re

REG_RE = re.compile(r'^(-|abs\()?([vas])(\d+)\)?$')
RNG_RE = re.compile(r'^(-)?([vas])\[(\d+):(\d+)\]$')
TRANS = ('v_exp_f32', 'v_log_f32', 'v_rcp_f32', 'v_rsq_f32', 'v_sqrt_f32', 'v_sin_f32', 'v_cos_f32')


def regs_of(op):
    op = op.strip()
    m = REG_RE.match(op)
    if m:
        return [(m.group(2), int(m.group(3)))]
    m = RNG_RE.match(op)
    if m:
        return [(m.group(2), i) for i in range(int(m.group(3)), int(m.group(4)) + 1)]
    if op == 'vcc':
        return [('s', 'vcc_lo'), ('s', 'vcc_hi')]
    if op == 'exec':
        return [('s', 'exec_lo'), ('s', 'exec_hi')]
    if op in ('vcc_lo', 'vcc_hi', 'exec_lo', 'exec_hi', 'm0'):
        return [('s', op)]
    return []


class Ins:
    def __init__(self, text, tag=None, opt=False):
        self.text = text
        self.tag = tag
        self.opt = opt
        t = text.split(';')[0].strip()
        self.label = t.endswith(':') or t.startswith('.') or t == ''
        self.mn = t.split()[0] if t else ''
        rest = t[len(self.mn):].strip()
        ops = [o.strip() for o in rest.split(',')] if rest else []
        self.mods = ''
        if ops:
            last = ops[-1].split()
            ops[-1] = last[0]
            self.mods = ' '.join(last[1:])
        self.ops = ops
        self.classify()

    def classify(self):
        mn, ops = self.mn, self.ops
        R = lambda i: regs_of(ops[i]) if i < len(ops) else []
        allr = lambda a: [r for i in range(a, len(ops)) for r in R(i)]
        self.kind = 'other'
        self.rd, self.wr = [], []
        self.passes = 0
        if self.label:
            self.kind = 'label'
        elif mn.startswith('v_mfma'):
            self.kind = 'mfma'
            self.passes = 8 if '32x32' in mn else (4 if '16x16' in mn else 2)
            self.wr = R(0)
            self.A, self.B, self.C = R(1), R(2), R(3)
            self.rd = self.A + self.B + self.C
        elif mn.startswith('v_'):
            self.kind = 'valu'
            self.wr = R(0)
            self.rd = allr(1)
            if mn.startswith('v_permlane'):
                self.wr = R(0) + R(1)
                self.rd = R(0) + R(1)
            if mn.startswith(('v_fmac', 'v_dot2c')) or '_dpp' in mn:
                self.rd = self.rd + R(0)
            if mn.startswith(('v_add_co', 'v_sub_co', 'v_addc_co')):
                self.wr = R(0) + R(1)
                self.rd = allr(2)
        elif mn.startswith('ds_'):
            self.kind = 'ds'
            if mn.startswith('ds_read'):
                self.wr = R(0)
                self.rd = allr(1)
            else:
                self.rd = allr(0)
        elif mn.startswith(('buffer_', 'global_')):
            self.kind = 'vm'
            self.dma = (' lds' in ' ' + self.mods) or '_lds_' in mn
            if 'load' in mn and not self.dma:
                self.wr = R(0)
                self.rd = allr(1)
            else:
                self.rd = allr(0)
                if self.dma:
                    self.rd = self.rd + [('s', 'm0')]
            self.wide_store = 'store' in mn and mn.endswith(('x3', 'x4'))
            if self.wide_store:
                self.sdata = R(0) if mn.startswith('buffer_') else R(1)
        elif mn.startswith(('s_load', 's_memtime', 's_memrealtime')):
            self.kind = 'smem'
            self.wr = R(0)
            self.rd = allr(1)
        elif mn.startswith('s_'):
            self.kind = 'salu'
            if mn.startswith(('s_cmp', 's_cbranch', 's_branch', 's_waitcnt', 's_barrier', 's_nop', 's_sleep',
                              's_setprio', 's_endpgm', 's_bitcmp')):
                self.rd = allr(0)
            else:
                self.wr = R(0)
                self.rd = allr(1)


class Wait:
    def __init__(self, vm=None, lg=None, regs=None):
        self.vm, self.lg = vm, lg
        self.regs = [r for o in (regs or []) for r in regs_of(o)]


def I(text, tag=None, opt=False):
    return Ins(text, tag, opt)


def flat(x):
    out = []
    for e in x:
        if isinstance(e, (list, tuple)):
            out += flat(e)
        elif isinstance(e, str):
            out += [Ins(t.strip()) for t in e.split('\n') if t.strip()]
        elif e is not None:
            out.append(e)
    return out


def weave(main, fill, k=5, start=0):
    main = list(main)
    fill = flat(fill)
    out = []
    pos = 0
    for i, m in enumerate(main):
        out.append(m)
        if i >= start:
            kk = k(i) if callable(k) else k
            n = 0
            while pos < len(fill) and n < kk:
                f = fill[pos]
                out.append(f)
                pos += 1
                if isinstance(f, Ins):
                    n += 2 if f.mn.startswith(TRANS) else 1
    out += fill[pos:]
    return out


def finalize(items):
    items = flat(items)
    out = []
    vm_ops, lg_ops = [], []
    vm_done = lg_done = 0
    pend = {}
    sm_out = False
    pos = 0
    lastw = {}
    lastC = {}
    lastS = {}
    stats = {'nops': 0, 'waits': 0}

    def emit_wait(nv, nl, sm, opt):
        nonlocal vm_done, lg_done, sm_out, pos
        parts = []
        if nv is not None and nv >= vm_done:
            n = sum(1 for (_, o) in vm_ops[nv + 1:] if not o)
            parts.append('vmcnt(%d)' % min(n, 63))
            if not opt:
                vm_done = nv + 1
        if sm and sm_out:
            parts.append('lgkmcnt(0)')
            if not opt:
                lg_done = len(lg_ops)
                sm_out = False
                for r in [r for r, v in pend.items() if v[0] == 'sm']:
                    del pend[r]
        elif nl is not None and nl >= lg_done:
            n = sum(1 for (_, o) in lg_ops[nl + 1:] if not o)
            parts.append('lgkmcnt(%d)' % min(n, 15))
            if not opt:
                lg_done = nl + 1
                if n == 0:
                    sm_out = False
                    for r in [r for r, v in pend.items() if v[0] == 'sm']:
                        del pend[r]
        if parts:
            out.append('s_waitcnt ' + ' '.join(parts))
            stats['waits'] += 1
            if not opt:
                pos += 1

    def last_tag(ops, tags):
        if tags == 'all':
            return len(ops) - 1 if ops else None
        if isinstance(tags, str):
            tags = [tags]
        idx = None
        for t in tags:
            hit = [i for i, (tg, _) in enumerate(ops) if tg == t]
            assert hit, 'wait on unknown tag %s' % t
            idx = max(hit[-1], idx if idx is not None else -1)
        return idx

    def need_regs(rs):
        nv = nl = None
        sm = False
        for r in rs:
            p = pend.get(r)
            if not p:
                continue
            if p[0] == 'vm' and p[1] >= vm_done:
                nv = max(p[1], nv if nv is not None else -1)
            elif p[0] == 'lg' and p[1] >= lg_done:
                nl = max(p[1], nl if nl is not None else -1)
            elif p[0] == 'sm':
                sm = True
        return nv, nl, sm

    for it in items:
        if isinstance(it, Wait):
            nv, nl, sm = need_regs(it.regs)
            if it.vm is not None:
                x = last_tag(vm_ops, it.vm)
                if x is not None:
                    nv = max(x, nv if nv is not None else -1)
            if it.lg is not None:
                x = last_tag(lg_ops, it.lg)
                if x is not None:
                    nl = max(x, nl if nl is not None else -1)
            emit_wait(nv, nl, sm, False)
            continue
        ins = it
        if ins.kind == 'label':
            out.append(ins.text)
            continue
        if ins.mn == 's_waitcnt':
            out.append(ins.text)
            if not ins.opt:
                pos += 1
                m = re.search(r'vmcnt\((\d+)\)', ins.text)
                if m and int(m.group(1)) == 0:
                    vm_done = len(vm_ops)
                m = re.search(r'lgkmcnt\((\d+)\)', ins.text)
                if m and int(m.group(1)) == 0:
                    lg_done = len(lg_ops)
                    sm_out = False
                    for r in [r for r, v in pend.items() if v[0] == 'sm']:
                        del pend[r]
            continue
        if not ins.opt:
            nv, nl, sm = need_regs(ins.rd + ins.wr)
            emit_wait(nv, nl, sm, ins.opt)
        need = 0

        def req(p, n):
            nonlocal need
            need = max(need, n - (pos - p - 1))

        isv = ins.kind == 'valu'
        for r in ins.rd:
            lw = lastw.get(r)
            if not lw:
                if r not in (('v', 0), ('s', 0), ('s', 1), ('s', 2)):
                    print('WARNING: read of never-written', r, 'in', ins.text)
                continue
            p, w = lw
            if w.kind == 'valu':
                if r[0] in 'va':
                    dl = w.mn.startswith('v_dot')
                    if dl and not (ins.mn == w.mn and r in ins.wr):
                        req(p, 3)
                    if ins.kind == 'mfma':
                        req(p, 2)
                    if isv and (ins.mn.startswith('v_permlane') or '_dpp' in ins.mn):
                        req(p, 2)
                    if isv and ins.mn.startswith(('v_readlane', 'v_readfirstlane')):
                        req(p, 1)
                    if isv and w.mn.startswith(TRANS):
                        req(p, 1)
                else:
                    if isv:
                        req(p, 2)
                    if ins.kind == 'vm':
                        req(p, 5)
                    if ins.kind in ('salu', 'smem'):
                        req(p, 1)
            elif w.kind == 'mfma':
                big = {2: 5, 4: 8, 8: 12}[w.passes]
                if ins.kind == 'mfma':
                    if r in ins.A or r in ins.B:
                        req(p, big)
                    elif not (ins.C == w.wr and ins.passes == w.passes):
                        req(p, {2: 4, 4: 6, 8: 10}[w.passes])
                    elif w.passes == 2:
                        req(p, 2)
                else:
                    req(p, big)
            elif w.kind == 'salu' and r == ('s', 'm0') and ins.kind == 'vm':
                req(p, 1)
        for r in ins.wr:
            lw = lastw.get(r)
            if lw:
                p, w = lw
                if w.kind == 'mfma' and ins.kind != 'mfma':
                    req(p, {2: 5, 4: 8, 8: 12}[w.passes])
                if w.kind == 'mfma' and ins.kind == 'mfma' and ins.passes != w.passes:
                    req(p, {2: 5, 4: 8, 8: 12}[w.passes])
                if w.kind == 'valu' and w.mn.startswith('v_dot') and ins.mn != w.mn:
                    req(p, 3)
            if isv and r in lastC:
                p, ps = lastC[r]
                req(p, {2: 1, 4: 3, 8: 7}[ps])
            if r in lastS:
                req(lastS[r], 2)
        while need > 0:
            n = min(need, 16)
            out.append('s_nop %d' % (n - 1))
            stats['nops'] += n
            if not ins.opt:
                pos += n
            need -= n
        out.append(ins.text)
        here = pos
        if ins.mn == 's_nop':
            if not ins.opt:
                pos += int(ins.ops[0], 0) + 1
        elif not ins.opt:
            pos += 1
        else:
            here = pos - 1
        for r in ins.wr:
            lastw[r] = (here, ins)
            pend.pop(r, None)
        if ins.kind == 'mfma':
            for r in ins.C:
                lastC[r] = (here, ins.passes)
        if ins.kind == 'vm':
            vm_ops.append((ins.tag, ins.opt))
            if not ins.opt:
                for r in ins.wr:
                    pend[r] = ('vm', len(vm_ops) - 1)
            if ins.wide_store:
                for r in ins.sdata:
                    lastS[r] = here
        elif ins.kind == 'ds':
            lg_ops.append((ins.tag, ins.opt))
            for r in ins.wr:
                pend[r] = ('lg', len(lg_ops) - 1)
        elif ins.kind == 'smem':
            sm_out = True
            if not ins.opt:
                for r in ins.wr:
                    pend[r] = ('sm', 0)
    return out, stats
```

```python
import sys, os
sys.path.insert(0, os.path.dirname(os.path.abspath(__file__)))
from asmlib import I, Wait, weave, finalize, flat

NAME = "sequential_preLN__sliding_block__glu_gated_glu__prompt"

WS_EPOCH = 0
WS_FLAG = 0x10000
F_K, F_V, F_R, F_OA, F_OB, F_HA, F_HB = range(7)
WS_GFLAG = 0x80000
WS_K = 0x200000
WS_V = 0x400000
WS_O = 0x600000
WS_H = 0x800000
WS_ST = 0xA00000
WS_G = 0xC00000
WS_WGU = 0x1400000
WS_WD = 0x1800000
WS_STAMP = 0x1C00000
WS_SIZE = 0x2000000
TILE = 33792
OOB = 0x80000000

L_VL = 65536
L_KO = 106496
L_RL = 122880
L_EX = 147456
L_RS = L_EX + 2048
L_RED = 131072
LDS_BYTES = 163840

sX, sW, sWS = "s[4:7]", "s[8:11]", "s[12:15]"
pWO, pDBG, pG, pU, pD, pOUT = 16, 18, 20, 22, 24, 26
sWAVE, sRB, sJ8, sC, sJ16, sQ = "s28", "s29", "s30", "s31", "s32", "s33"
sXO, sWO_, sW4K, sSPIN = "s34", "s35", "s36", "s37"
sVO = [38, 39, 40, 41]
sT0, sT1, sT2, sFL = "s42", "s43", "s44", "s45"
MASK0 = 46
sKST, sVST, sKLD, sOST = "s78", "s79", "s80", "s81"
sHALF = "s[82:83]"
sGUS, sDS = "s84", "s85"
STAMP_A = 86

vL16 = "v1"
vX0, vX1, vW0, vW1 = "v2", "v3", "v4", "v5"
vXR = [6, 7, 8, 9]
vWR = [10, 11, 12, 13]
vSQ0, vSQ1 = "v14", "v15"
SEL, RS, CS, BEXT, AEXT = 16, 20, 24, 28, 30
vRSTD, vEX = "v32", "v33"
NON = 34
vFLAG = "v36"
POLL = 38
PK = 40
TMP = 48
vWOD = [56, 57, 58, 59]
vGUD = [60, 61]
vXRES, vTR = "v62", "v63"
ACCKQ, ACCV, WB, XS = 64, 80, 96, 160
PM, KAD = 232, 240
vPOLLK, vVR, vVW, vVG, vKW, vKR, vRW, vRR = ["v%d" % i for i in range(248, 256)]
S0, S1, S2, NEGM, MM, OO, PP = 64, 80, 96, 112, 128, 144, 160
KA, VA = 136, 176

LOG2E = 1.4426950408889634


def f2u(x):
    import struct
    return "0x%08x" % struct.unpack("<I", struct.pack("<f", x))[0]


def v(a, n=1):
    return "v%d" % a if n == 1 else "v[%d:%d]" % (a, a + n - 1)


def a_(a, n=1):
    return "a%d" % a if n == 1 else "a[%d:%d]" % (a, a + n - 1)


def sp(a):
    return "s[%d:%d]" % (a, a + 1)


def mfma(d, A, B, c=None):
    return I("v_mfma_f32_32x32x16_bf16 %s, %s, %s, %s" % (d, A, B, d if c is None else c))


def msum(d, B, first):
    return I("v_mfma_f32_16x16x32_bf16 %s, %s, %s, %s" % (v(d, 4), v(SEL, 4), B, "0" if first else v(d, 4)))


def mext(d, A, B):
    return I("v_mfma_f32_32x32x8_bf16 %s, %s, %s, %s" % (d, A, B, d))


class Gen:
    def __init__(self, **p):
        self.p = dict(mapping=4, stamps=False, rot=True, lagA=4, gstages=[[0, 1, 2], [3, 4], [5], [6]])
        self.p.update(p)
        self.tail = []
        self.stamp_names = []
        self.late = False
        self.n_early = 0
        self.n_late = 0

    def stamp(self, name):
        if not self.p["stamps"]:
            return []
        if not self.late:
            r = STAMP_A + 2 * self.n_early
            self.n_early += 1
            assert r < 102
        else:
            r = MASK0 + 2 * self.n_late
            self.n_late += 1
            assert r < MASK0 + 32
        self.stamp_names.append((name, r))
        return [I("s_memtime %s" % sp(r))]

    def flag_store(self, base, vaddr=vFLAG):
        return ["s_mov_b32 %s, 0x%x" % (sFL, base),
                I("buffer_store_dwordx2 %s, %s, %s, %s offen sc1" % (v(NON, 2), vaddr, sWS, sFL))]

    def poll_issue(self, vaddr, base):
        return ["s_mov_b32 %s, 0x%x" % (sFL, base),
                I("buffer_load_dwordx2 %s, %s, %s, %s offen sc1" % (v(POLL, 2), vaddr, sWS, sFL))]

    def poll_check(self, vaddr, base, mask, name):
        self.tail += [
            "L_spin_%s:" % name,
            "s_mov_b32 %s, 0x%x" % (sFL, base),
            "s_add_u32 %s, %s, 1" % (sSPIN, sSPIN),
            "buffer_load_dwordx2 %s, %s, %s, %s offen sc1" % (v(POLL, 2), vaddr, sWS, sFL),
            "s_cmp_gt_u32 %s, 0x20000" % sSPIN,
            "s_cbranch_scc1 L_end",
            "s_waitcnt vmcnt(0)",
            "v_cmp_eq_u64 vcc, %s, %s" % (v(POLL, 2), v(NON, 2)),
            "s_nop 1",
            "s_cmp_eq_u32 vcc_lo, 0x%x" % mask,
            "s_cbranch_scc0 L_spin_%s" % name,
            "s_branch L_ok_%s" % name,
        ]
        return ["v_cmp_eq_u64 vcc, %s, %s" % (v(POLL, 2), v(NON, 2)),
                "s_cmp_eq_u32 vcc_lo, 0x%x" % mask,
                "s_cbranch_scc0 L_spin_%s" % name,
                "L_ok_%s:" % name]

    def srd(self, ptr, size):
        return ["s_mov_b32 s8, s%d" % ptr, "s_mov_b32 s9, s%d" % (ptr + 1), "s_mov_b32 s10, 0x%x" % size]

    def split_hi_lo_A(self, src, t):
        return ["v_cvt_pk_bf16_f32 %s, %s, %s" % (v(AEXT), src, src),
                "v_and_b32 %s, 0xffff0000, %s" % (t, v(AEXT)),
                "v_sub_f32 %s, %s, %s" % (t, src, t),
                "v_cvt_pk_bf16_f32 %s, %s, %s" % (v(AEXT + 1), t, t)]

    def stats_finish(self, t, u, x):
        return ["v_mov_b32 %s, %s" % (u, t),
                "v_permlane32_swap_b32 %s, %s" % (t, u),
                "v_mul_f32 %s, %s, %s" % (t, f2u(-1.0 / 512), t),
                "v_mul_f32 %s, %s, %s" % (u, f2u(1.0 / 512), u),
                "v_cvt_pk_bf16_f32 %s, %s, %s" % (x, t, t),
                "v_fma_f32 %s, -%s, %s, %s" % (u, t, t, u),
                "v_and_b32 %s, 0xffff0000, %s" % (x, x),
                "v_max_f32 %s, 0, %s" % (u, u),
                "v_sub_f32 %s, %s, %s" % (t, t, x),
                "v_add_f32 %s, %s, %s" % (u, f2u(1e-5), u),
                "v_cvt_pk_bf16_f32 %s, %s, %s" % (v(BEXT), x, t),
                "v_cvt_pk_bf16_f32 %s, %s, %s" % (v(BEXT + 1), x, t)]

    def prologue(self):
        p = self.p
        o = []
        o += ["s_cmp_ge_u32 s2, 256", "s_cbranch_scc1 L_end"]
        o += self.stamp("start")
        o += ["s_load_dwordx2 s[4:5], s[0:1], 0", "s_load_dwordx2 s[8:9], s[0:1], 8",
              "s_load_dwordx2 s[12:13], s[0:1], 72", "s_load_dwordx2 %s, s[0:1], 16" % sp(pWO),
              "s_load_dwordx2 %s, s[0:1], 64" % sp(pDBG),
              "s_load_dwordx8 s[20:27], s[0:1], 32"]
        o += ["v_lshrrev_b32 v2, 6, v0", "v_and_b32 v0, 63, v0", "v_readfirstlane_b32 %s, v2" % sWAVE]
        if p["mapping"] == 4:
            o += ["s_and_b32 s3, s2, 6", "s_lshl_b32 s3, s3, 2", "s_lshr_b32 %s, s2, 5" % sRB,
                  "s_add_u32 %s, %s, s3" % (sRB, sRB),
                  "s_and_b32 s3, s2, 1", "s_lshl_b32 s3, s3, 2", "s_bfe_u32 %s, s2, 0x20003" % sJ8,
                  "s_add_u32 %s, %s, s3" % (sJ8, sJ8)]
        else:
            o += ["s_and_b32 s3, s2, 7", "s_lshl_b32 s3, s3, 2", "s_lshr_b32 %s, s2, 6" % sRB,
                  "s_add_u32 %s, %s, s3" % (sRB, sRB), "s_bfe_u32 %s, s2, 0x30003" % sJ8]
        o += ["v_lshrrev_b32 v40, 3, v0", "v_and_b32 v41, 7, v0", "v_lshrrev_b32 v42, 4, v0",
              "s_lshl_b32 %s, %s, 4" % (sT0, sWAVE),
              "s_lshl_b32 %s, %s, 6" % (sT1, sRB), "s_add_u32 %s, %s, %s" % (sT1, sT1, sT0),
              "v_add_u32 v43, %s, v40" % sT1, "v_lshlrev_b32 v43, 10, v43",
              "v_xor_b32 v44, v41, v42", "v_lshl_add_u32 %s, v44, 4, v43" % vX0,
              "v_xor_b32 v44, 4, v44", "v_lshl_add_u32 %s, v44, 4, v43" % vX1,
              "v_add_u32 %s, %d, %s" % (vX1, 8192 - 1024, vX1),
              "v_and_b32 v45, 1, v42", "v_lshlrev_b32 v45, 2, v45", "v_xor_b32 v45, v45, v41",
              "v_lshlrev_b32 v45, 4, v45",
              "v_add_u32 v43, %s, v40" % sT0, "v_mul_u32_u24 v43, 3072, v43",
              "s_lshl_b32 %s, %s, 7" % (sT1, sJ8), "s_add_u32 %s, %s, %d" % (sT1, sT1, 2048 + 1024),
              "v_add3_u32 %s, v43, v45, %s" % (vW0, sT1),
              "v_add_u32 %s, %d, %s" % (vW1, 8 * 3072 - 1024, vW0),
              "s_lshl_b32 %s, %s, 12" % (sW4K, sWAVE)]
        if p["rot"]:
            o += ["s_add_u32 s3, %s, %s" % (sRB, sJ8), "s_and_b32 s3, s3, 7"]
        else:
            o += ["s_mov_b32 s3, 0"]
        o += ["s_lshl_b32 %s, s3, 7" % sXO, "s_mul_i32 %s, s3, 196608" % sWO_,
              "s_mov_b32 s6, 0x200000", "s_mov_b32 s7, 0x20000",
              "s_mov_b32 s10, 0x%x" % (0x180000 + 4096), "s_mov_b32 s11, 0x20000",
              "s_mov_b32 s14, 0x%x" % WS_SIZE, "s_mov_b32 s15, 0x20000",
              "s_sub_u32 s8, s8, 4096", "s_subb_u32 s9, s9, 0"]
        for u in range(3):
            o += self.dma_unit(u)
        o += self.stamp("dma0")
        o += ["s_or_b32 s3, s2, %s" % sWAVE, "s_cbranch_scc1 L_noep1",
              I("s_load_dwordx2 %s, s[12:13], 0 glc" % sp(sVO[0]), opt=True),
              I("s_waitcnt lgkmcnt(0)", opt=True),
              I("s_add_u32 s38, s38, 1", opt=True), I("s_or_b32 s39, s39, 1", opt=True),
              I("v_mov_b32 v46, s38", opt=True), I("v_mov_b32 v47, s39", opt=True), I("v_mov_b32 v48, 0", opt=True),
              I("s_mov_b64 exec, 1", opt=True),
              I("global_store_dwordx2 v48, v[46:47], %s sc1" % sp(pDBG), opt=True),
              I("global_store_dwordx2 v48, v[46:47], s[12:13] sc1", opt=True),
              I("s_mov_b64 exec, -1", opt=True),
              "L_noep1:"]
        o += self.setup2()
        return o

    def setup2(self):
        p = self.p
        o = []
        o += ["v_lshlrev_b32 %s, 4, v0" % vL16, "v_and_b32 v46, 31, v0", "v_lshrrev_b32 v47, 5, v0",
              "v_and_b32 v48, 15, v0", "s_mov_b32 %s, 0" % sSPIN,
              "s_lshl_b32 %s, %s, 3" % (sQ, sRB), "s_add_u32 %s, %s, %s" % (sQ, sQ, sJ8),
              "s_lshr_b32 %s, %s, 1" % (sC, sRB)]
        if p["mapping"] == 4:
            o += ["s_and_b32 s3, s2, 1", "s_lshl_b32 s3, s3, 3", "s_bfe_u32 %s, s2, 0x30003" % sJ16,
                  "s_add_u32 %s, %s, s3" % (sJ16, sJ16)]
        else:
            o += ["s_bfe_u32 %s, s2, 0x40003" % sJ16]
        o += ["s_and_b32 %s, %s, 1" % (sT0, sWAVE), "s_lshr_b32 %s, %s, 1" % (sT1, sWAVE)]
        o += ["v_lshrrev_b32 v49, 4, v46", "s_lshl_b32 s3, %s, 1" % sT0, "v_add_u32 v49, s3, v49",
              "v_lshlrev_b32 v49, 12, v49", "v_lshl_add_u32 v49, v48, 7, v49",
              "v_bfe_u32 v50, v0, 1, 3", "s_lshl_b32 s3, %s, 1" % sWAVE, "v_add_u32 v51, s3, v47",
              "v_xor_b32 v50, v50, v51", "v_lshl_add_u32 %s, v50, 4, v49" % v(vXR[0])]
        o += ["v_xor_b32 %s, %d, %s" % (v(vXR[i]), 32 * i, v(vXR[0])) for i in (1, 2, 3)]
        o += ["v_lshrrev_b32 v49, 2, v48", "v_lshl_add_u32 v50, v47, 3, v49", "v_lshlrev_b32 v50, 7, v50",
              "v_lshrrev_b32 v51, 3, v48", "v_xor_b32 v52, %s, v51" % sT1, "v_lshl_add_u32 v50, v52, 6, v50",
              "v_and_b32 v52, 1, v42", "v_lshl_add_u32 v50, v52, 5, v50",
              "v_and_b32 v53, 3, v0", "v_lshl_add_u32 v50, v53, 3, v50",
              "v_add_u32 %s, %s, v50" % (v(vWR[0]), sW4K)]
        o += ["v_xor_b32 %s, %d, %s" % (v(vWR[i]), 4096 * i, v(vWR[0])) for i in (1, 2, 3)]
        o += ["v_lshl_add_u32 v50, v47, 2, v49", "v_lshlrev_b32 v50, 7, v50", "v_lshl_add_u32 v50, v51, 6, v50",
              "v_and_b32 v54, 1, v0", "v_lshl_add_u32 v50, v54, 5, v50",
              "v_lshrrev_b32 v54, 1, v53", "v_lshl_add_u32 v54, v52, 1, v54",
              "v_lshl_add_u32 %s, v54, 3, v50" % vTR]
        o += ["v_cmp_eq_u32 vcc, v49, v42", "v_mov_b32 v50, 0x3f803f80",
              "v_cndmask_b32 %s, 0, v50, vcc" % v(SEL)]
        o += ["v_mov_b32 %s, %s" % (v(SEL + i), v(SEL)) for i in (1, 2, 3)]
        o += ["v_mov_b32 %s, 0" % vSQ0, "v_mov_b32 %s, 0" % vSQ1]
        o += ["s_lshl_b32 s3, %s, 9" % sWAVE, "s_add_u32 s3, s3, %d" % L_EX, "v_lshl_add_u32 %s, v0, 3, s3" % vEX,
              "s_lshl_b32 s3, %s, 7" % sWAVE, "s_add_u32 s3, s3, %d" % L_RS,
              "v_lshl_add_u32 %s, v46, 2, s3" % vRW, "v_lshl_add_u32 %s, v47, 4, s3" % vRR]
        o += ["s_lshl_b32 s3, %s, 7" % sQ, "s_cmp_eq_u32 %s, 0" % sWAVE, "s_cselect_b32 s3, s3, 0x%x" % OOB,
              "v_mov_b32 v50, s3", "v_mov_b32 v55, 0x%x" % OOB, "v_cmp_eq_u32 vcc, 0, v0",
              "v_cndmask_b32 %s, v55, v50, vcc" % vFLAG]
        o += ["s_sub_u32 s3, %s, 4" % sRB, "v_add_u32 v50, s3, v0", "v_max_i32 v50, 0, v50",
              "v_lshl_add_u32 v50, v50, 3, %s" % sJ8, "v_lshlrev_b32 v50, 7, v50",
              "v_cmp_gt_u32 vcc, 4, v0", "v_cndmask_b32 %s, v55, v50, vcc" % vPOLLK]
        o += ["v_lshlrev_b32 v50, 8, v47", "v_lshl_add_u32 v50, v48, 4, v50",
              "s_mul_i32 s3, %s, 10240" % sWAVE, "s_add_u32 s3, s3, %d" % L_VL, "v_add_u32 %s, s3, v50" % vVR,
              "v_lshl_add_u32 %s, v52, 16, v50" % vVG,
              "s_mul_i32 s3, %s, 20480" % sT1, "s_lshl_b32 %s, %s, 10" % (sT2, sT0), "s_add_u32 s3, s3, %s" % sT2,
              "s_add_u32 s3, s3, %d" % (L_VL + 8192),
              "v_mul_u32_u24 v54, 10240, v52", "v_add3_u32 %s, v54, v50, s3" % vVW]
        o += ["s_lshl_b32 s3, %s, 12" % sT1, "s_add_u32 s3, s3, %s" % sT2, "s_add_u32 s3, s3, %d" % L_KO,
              "v_add_u32 %s, s3, %s" % (vKW, vL16),
              "s_lshl_b32 s3, %s, 11" % sWAVE, "s_add_u32 s3, s3, %d" % L_KO, "v_add_u32 %s, s3, %s" % (vKR, vL16)]
        o += ["s_lshl_b32 s3, %s, 1" % sJ8, "s_add_u32 s3, s3, %s" % sT1, "s_lshl_b32 s3, s3, 17",
              "s_add_u32 s3, s3, %s" % sT2, "s_lshl_b32 %s, %s, 11" % (sT2, sRB), "s_add_u32 s3, s3, %s" % sT2,
              "s_add_u32 %s, s3, 0x%x" % (sKST, WS_K), "s_add_u32 %s, s3, 0x%x" % (sVST, WS_V),
              "s_lshl_b32 s3, %s, 2" % sJ8, "s_add_u32 s3, s3, %s" % sWAVE,
              "s_lshl_b32 %s, s3, 16" % sKLD,
              "s_lshl_b32 s3, s3, 10", "s_lshl_b32 %s, %s, 16" % (sOST, sRB), "s_add_u32 %s, %s, s3" % (sOST, sOST),
              "s_add_u32 %s, %s, 0x%x" % (sOST, sOST, WS_O)]
        o += ["v_and_b32 v54, 0x200, %s" % vL16]
        for pi in range(4):
            o += ["s_add_u32 s3, %s, %s" % (sKLD, sT2),
                  "s_add_u32 s3, s3, 0x%x" % (WS_V - 8192 + (pi // 2) * 4096),
                  "s_cmp_ge_u32 %s, %d" % (sRB, 4 - pi),
                  "s_cselect_b32 s%d, s3, 0x%x" % (sVO[pi], OOB),
                  "s_cselect_b32 %s, 0x3f803f80, 0" % sT0,
                  "s_cselect_b64 vcc, -1, 0",
                  "s_sub_u32 s3, %s, %d" % (sT2, 8192 - pi * 2048),
                  "v_add_u32 v50, s3, %s" % vL16, "v_add_u32 v51, 1024, v50",
                  "v_cndmask_b32 %s, v54, v50, vcc" % v(KAD + 2 * pi),
                  "v_cndmask_b32 %s, v54, v51, vcc" % v(KAD + 2 * pi + 1),
                  "v_mov_b32 v50, %s" % sT0]
            o += ["v_accvgpr_write_b32 %s, v50" % a_(VA + 16 * pi + i) for i in range(16)]
        o += ["v_mov_b32 v50, 0x3f803f80"]
        o += ["v_accvgpr_write_b32 %s, v50" % a_(VA + 64 + i) for i in range(16)]
        o += ["s_add_u32 %s, %s, 0x%x" % (sKLD, sKLD, WS_K)]
        for i in range(16):
            key = 8 * (i // 4) + i % 4
            o += ["s_mov_b32 s%d, 0x%x" % (MASK0 + 2 * i, (0xffffffff << key) & 0xffffffff),
                  "s_mov_b32 s%d, 0x%x" % (MASK0 + 2 * i + 1, (0xffffffff << (key + 4)) & 0xffffffff)]
        o += ["v_mov_b32 v50, 0xffff", "v_mov_b32 v51, 0xffff0000"]
        for d in range(8):
            o += ["v_cndmask_b32 v52, 0, v50, %s" % sp(MASK0 + 4 * d),
                  "v_cndmask_b32 v53, 0, v51, %s" % sp(MASK0 + 4 * d + 2),
                  "v_or_b32 %s, v52, v53" % v(PM + d)]
        o += ["s_mov_b32 s82, 0xffff", "s_mov_b32 s83, 0xffff"]
        o += ["v_lshl_add_u32 v50, v40, 10, v45", "s_lshl_b32 s3, %s, 7" % sJ8, "v_add_u32 %s, s3, v50" % v(vWOD[0])]
        o += ["v_add_u32 %s, %d, %s" % (v(vWOD[i]), i * (8192 - 1024), v(vWOD[0])) for i in (1, 2, 3)]
        o += ["v_mul_u32_u24 v50, 3584, v40", "v_add_u32 %s, v50, v45" % v(vGUD[0]),
              "v_add_u32 %s, %d, %s" % (v(vGUD[1]), 8 * 3584 - 1024, v(vGUD[0])),
              "s_lshl_b32 %s, %s, 3" % (sT0, sRB), "s_add_u32 %s, %s, %s" % (sT0, sT0, sWAVE),
              "s_lshl_b32 %s, %s, 13" % (sT0, sT0), "s_add_u32 s3, s3, %s" % sT0,
              "v_lshlrev_b32 v50, 10, v41", "v_lshl_add_u32 v50, v40, 4, v50", "v_add_u32 %s, s3, v50" % vXRES]
        o += ["s_mul_i32 %s, %s, 2341" % (sT0, sQ), "s_lshr_b32 %s, %s, 16" % (sT0, sT0),
              "s_mul_i32 s3, %s, 28" % sT0, "s_sub_u32 %s, %s, s3" % (sT1, sQ),
              "s_lshl_b32 s3, %s, 2" % sT0, "s_add_u32 s3, s3, %s" % sWAVE, "s_mul_i32 s3, s3, %d" % (16 * 3584),
              "s_lshl_b32 %s, %s, 7" % (sT1, sT1), "s_add_u32 %s, s3, %s" % (sGUS, sT1),
              "s_mul_i32 %s, %s, 37" % (sT0, sRB), "s_lshr_b32 %s, %s, 8" % (sT0, sT0),
              "s_mul_i32 s3, %s, 21" % sT0, "s_add_u32 s3, s3, %s" % sRB,
              "s_mul_i32 %s, %s, 7" % (sT1, sWAVE), "s_add_u32 s3, s3, %s" % sT1,
              "s_lshl_b32 %s, s3, 14" % sDS,
              "s_cmp_lt_u32 %s, 224" % sQ,
              "s_cselect_b32 %s, %s, 0x%x" % (sGUS, sGUS, OOB), "s_cselect_b32 %s, %s, 0x%x" % (sDS, sDS, OOB)]
        return o

    def adv_w(self):
        return ["s_add_u32 %s, %s, 196608" % (sWO_, sWO_), "s_cmp_eq_u32 %s, %d" % (sWO_, 8 * 196608),
                "s_cselect_b32 %s, 0, %s" % (sWO_, sWO_)]

    def dma_unit(self, u):
        t = "u%d" % u
        o = []
        if u == 8:
            o += ["v_add_u32 %s, 1024, %s" % (vW0, vW0), "v_add_u32 %s, 1024, %s" % (vW1, vW1),
                  "v_add_u32 %s, 2048, %s" % (vX0, vW0), "v_add_u32 %s, 2048, %s" % (vX1, vW1)]
        if u == 12:
            o += ["v_subrev_u32 %s, 2048, %s" % (r, r) for r in (vW0, vW1, vX0, vX1)]
        o += ["s_add_u32 m0, %s, %d" % (sW4K, (u % 4) * 16384)]
        if u < 8:
            o += [I("buffer_load_dwordx4 %s, %s, %s offen lds" % (vX0, sX, sXO), t),
                  I("buffer_load_dwordx4 %s, %s, %s offen offset:1024 lds" % (vX1, sX, sXO), t)]
        else:
            o += [I("buffer_load_dwordx4 %s, %s, %s offen lds" % (vX0, sW, sWO_), t),
                  I("buffer_load_dwordx4 %s, %s, %s offen offset:1024 lds" % (vX1, sW, sWO_), t)]
            o += self.adv_w()
        o += [I("buffer_load_dwordx4 %s, %s, %s offen offset:2048 lds" % (vW0, sW, sWO_), t),
              I("buffer_load_dwordx4 %s, %s, %s offen offset:3072 lds" % (vW1, sW, sWO_), t)]
        if u < 15:
            o += self.adv_w()
        if u < 7:
            o += ["s_add_u32 %s, %s, 128" % (sXO, sXO), "s_and_b32 %s, %s, 1023" % (sXO, sXO)]
        return o

    @staticmethod
    def xop(c, i):
        return v(XS + 4 * (2 * c + i), 4) if i < 2 else a_(4 * (2 * c + i - 2), 4)

    @staticmethod
    def wreg(u, fi):
        return WB + 32 * (u % 2) + 4 * fi

    def wread(self, u, fi):
        part = 1 if u < 8 else fi // 4
        off = (u % 4) * 16384 + part * 2048
        r = self.wreg(u, fi)
        return [I("ds_read_b64_tr_b16 %s, %s offset:%d" % (v(r, 2), v(vWR[fi % 4]), off)),
                I("ds_read_b64_tr_b16 %s, %s offset:%d" % (v(r + 2, 2), v(vWR[fi % 4]), off + 512))]

    def sumsq(self, c):
        o = []
        for d in range(4):
            for i in range(2):
                r = v(XS + 4 * (2 * c + i) + d)
                o.append("v_dot2c_f32_bf16 %s, %s, %s" % ((vSQ0, vSQ1)[i], r, r))
        return o

    def cs_exchange(self, extra_wait=None):
        t = v(RS)
        return [I("ds_write_b32 %s, %s offset:4" % (vEX, v(CS)), "ex"),
                "v_xor_b32 %s, 512, %s" % (t, vEX),
                Wait(lg="ex", vm=extra_wait), "s_barrier",
                "ds_read_b32 %s, %s offset:4" % (t, t)], \
               ["v_add_f32 %s, %s, %s" % (t, t, v(CS))] + self.split_hi_lo_A(t, v(RS + 1))

    def qkv(self):
        o = []
        accK, accV = v(ACCKQ, 16), v(ACCV, 16)
        for u in range(8):
            o += [Wait(vm="u%d" % u, lg="all"), "s_barrier"]
            if u == 0:
                o += self.stamp("u0")
            for i in (0, 2, 1, 3):
                o += self.wread(u, i)
                o += ["ds_read_b128 %s, %s offset:%d" % (self.xop(u, i), v(vXR[i]), (u % 4) * 16384)]
            if u > 0:
                o += self.sumsq(u - 1)
            big = [mfma(accK, v(self.wreg(u, i), 4), self.xop(u, i), "0" if (u == 0 and i == 0) else None)
                   for i in (0, 2, 1, 3)]
            small = [msum(CS, v(self.wreg(u, 0), 4), u == 0), msum(RS, self.xop(u, 0), u == 0),
                     msum(CS, v(self.wreg(u, 2), 4), False), msum(RS, self.xop(u, 1), False)]
            fill = self.dma_unit(u + 3)
            if u == 6:
                fill = fill + ["v_mov_b32 %s, 0" % v(TMP),
                               I("global_load_dwordx2 %s, %s, %s sc1" % (v(NON, 2), v(TMP), sp(pDBG)))]
            if u < 7:
                o += weave(big + small, fill, k=lambda i: 4 if i < 4 else 1)
            else:
                o += self.sumsq(7)
                o += small
                t, ux = v(RS), v(RS + 1)
                chain = ["v_add_f32 %s, %s, %s" % (vSQ0, vSQ0, vSQ1),
                         "v_xor_b32 %s, 1024, %s" % (v(TMP), vEX), "v_xor_b32 %s, 512, %s" % (v(TMP + 1), vEX),
                         "v_permlane32_swap_b32 %s, %s" % (t, vSQ0),
                         "v_add_f32 %s, %s, %s" % (t, t, vSQ0),
                         I("ds_write2_b32 %s, %s, %s offset0:0 offset1:1" % (vEX, t, v(CS)), "ex")]
                o += [big[0]] + fill[:5] + [big[1]] + chain + [big[2], Wait(lg="ex"), "s_barrier",
                                                             "ds_read_b32 %s, %s" % (v(TMP), v(TMP)),
                                                             "ds_read_b32 %s, %s offset:4" % (v(TMP + 1), v(TMP + 1)),
                                                             big[3]] + fill[5:]
                o += ["v_add_f32 %s, %s, %s" % (t, t, v(TMP)),
                      "v_add_f32 %s, %s, %s" % (v(TMP + 1), v(TMP + 1), v(CS))]
                o += self.stats_finish(t, ux, v(RS + 2))
                o += self.split_hi_lo_A(v(TMP + 1), v(TMP + 2))
                o += ["v_rsq_f32 %s, %s" % (vRSTD, ux), mext(accK, v(AEXT, 2), v(BEXT, 2))]
        o += self.stamp("kdone")
        kepi = [I("ds_write_b32 %s, %s" % (vRW, vRSTD), "rs")]
        for e in range(2):
            kepi += ["v_mul_f32 %s, %s, %s" % (v(ACCKQ + 8 * e + i), vRSTD, v(ACCKQ + 8 * e + i)) for i in range(8)]
            kepi += ["v_cvt_pk_bf16_f32 %s, %s, %s" % (v(PK + 4 * e + d), v(ACCKQ + 8 * e + 2 * d), v(ACCKQ + 8 * e + 2 * d + 1))
                     for d in range(4)]
            if e == 1:
                kepi += ["s_add_u32 %s, %s, 0x10000" % (sKST, sKST)]
            kepi += [I("buffer_store_dwordx4 %s, %s, %s, %s offen sc1" % (v(PK + 4 * e, 4), vL16, sWS, sKST), "kst")]
        kepi += ["ds_write_b128 %s, %s offset:%d" % (vKW, v(PK + 4 * e, 4), 2048 * e) for e in range(2)]
        RV = [224, 228, TMP, TMP + 4]
        vepi = []
        for f in range(2):
            vepi += ["v_mul_f32 %s, %s, %s" % (v(ACCV + 8 * f + i), v(RV[(8 * f + i) // 4] + i % 4), v(ACCV + 8 * f + i))
                     for i in range(8)]
            vepi += ["v_cvt_pk_bf16_f32 %s, %s, %s" % (v(PK + 4 * f + d), v(ACCV + 8 * f + 2 * d), v(ACCV + 8 * f + 2 * d + 1))
                     for d in range(4)]
            vepi += [I("buffer_store_dwordx4 %s, %s, %s, %s offen offset:%d sc1" % (v(PK + 4 * f, 4), vVG, sWS, sVST, 512 * f), "vst")]
        vepi += ["ds_write_b128 %s, %s offset:%d" % (vVW, v(PK + 4 * f, 4), 512 * f) for f in range(2)]
        deferred = []
        for u in range(8, 16):
            isV = u < 12
            m = (u - 8) % 4
            acc = accV if isV else accK
            last = m == 3
            order = [0, 2, 4, 6, 1, 3, 5, 7] if last else list(range(8))

            def big1(fi, first):
                wf, xf = v(self.wreg(u, fi), 4), self.xop(2 * m + fi // 4, fi % 4)
                return mfma(acc, xf, wf, "0" if first else None) if isV else mfma(acc, wf, xf, "0" if first else None)
            big = [big1(fi, m == 0 and k == 0) for k, fi in enumerate(order)]
            small = [msum(CS, v(self.wreg(u, fi), 4), m == 0 and fi == 0) for fi in (0, 2, 4, 6)]
            reads = flat([self.wread(u, fi) for fi in order])
            dma = self.dma_unit(u + 3) if u + 3 < 16 else []
            o += [Wait(vm=["u%d" % u] + (["vst"] if u == 15 else []), lg="all"), "s_barrier"]
            if u == 15:
                o += self.flag_store(WS_FLAG + F_V * 0x8000)
            extra = []
            if u == 9:
                self.tail += ["L_spin_non:", "v_mov_b32 %s, 0" % v(NON), "s_add_u32 %s, %s, 1" % (sSPIN, sSPIN),
                              "global_load_dwordx2 %s, %s, %s sc1" % (v(NON, 2), v(NON), sp(pDBG)),
                              "s_cmp_gt_u32 %s, 0x20000" % sSPIN, "s_cbranch_scc1 L_end", "s_waitcnt vmcnt(0)",
                              "v_cmp_ne_u32 vcc, 0, %s" % v(NON + 1), "s_nop 1", "s_cmp_lg_u32 vcc_lo, 0",
                              "s_cbranch_scc0 L_spin_non", "s_branch L_ok_non"]
                extra = ["v_cmp_ne_u32 vcc, 0, %s" % v(NON + 1), "s_cmp_lg_u32 vcc_lo, 0",
                         "s_cbranch_scc0 L_spin_non", "L_ok_non:"]
            if u == 10:
                extra = ["ds_read_b128 %s, %s offset:%d" % (v(RV[a], 4), vRR, 32 * a) for a in range(4)]
                extra += ["ds_read_b128 %s, %s offset:%d" % (a_(KA + 32 + 4 * g, 4), vKR, 1024 * g) for g in range(2)]
            if u == 13:
                extra = ["s_mov_b64 exec, %s" % sHALF]
                extra += ["ds_read_b128 %s, %s offset:%d" % (a_(VA + 64 + 4 * g, 4), vVR, 8192 + 512 * g) for g in range(4)]
                extra += ["s_mov_b64 exec, -1"]
                extra = [extra]
            if u == 14:
                extra = self.poll_issue(vPOLLK, WS_FLAG + F_K * 0x8000)
            if m == 0:
                epi = kepi if isV else vepi
                o += reads[:8] + dma[:1]
                o += weave(big[:6], flat(epi[:14]) + reads[8:12] + flat(epi[14:]) + reads[12:] + flat(dma[1:]), k=7)
                deferred = big[6:] + small
            elif not last:
                o += reads[:4]
                o += weave(deferred, reads[4:], k=lambda i: 4 if i < 2 else 1)
                if u == 13:
                    o += big[:1] + extra[0] + weave(big[1:6], dma, k=4)
                else:
                    o += weave(big[:6], flat(dma) + flat(extra), k=4)
                deferred = big[6:] + small
            else:
                o += reads[:4]
                o += weave(deferred, reads[4:], k=lambda i: 4 if i < 2 else 1)
                ex1, ex2 = self.cs_exchange("kst" if isV else None)
                o += small + big[:1] + flat(dma)[:5] + big[1:2] + flat(dma)[5:10] + big[2:3] + ex1[:2] + big[3:4] + ex1[2:]
                if isV:
                    o += self.flag_store(WS_FLAG + F_K * 0x8000)
                o += big[4:5] + flat(dma)[10:] + big[5:7] + ex2 + big[7:]
                o += [mext(acc, v(BEXT, 2), v(AEXT, 2)) if isV else mext(acc, v(AEXT, 2), v(BEXT, 2))]
                deferred = []
                if isV:
                    o += self.stamp("vdone")
        o += self.stamp("qdone")
        o += ["v_mul_f32 %s, %s, %s" % (vRSTD, f2u(0.25 * LOG2E), vRSTD)]
        o += self.poll_check(vPOLLK, WS_FLAG + F_K * 0x8000, 0xf, "k")
        o += [I("buffer_load_dwordx4 %s, %s, %s, %s offen sc1" % (a_(KA + 4 * t, 4), v(KAD + t), sWS, sKLD)) for t in range(8)]
        for e in range(2):
            o += ["v_mul_f32 %s, %s, %s" % (v(ACCKQ + 8 * e + i), vRSTD, v(ACCKQ + 8 * e + i)) for i in range(8)]
            o += ["v_cvt_pk_bf16_f32 %s, %s, %s" % (v(PK + 4 * e + d), v(ACCKQ + 8 * e + 2 * d), v(ACCKQ + 8 * e + 2 * d + 1))
                  for d in range(4)]
            o += ["ds_write_b128 %s, %s offset:%d" % (vKW, v(PK + 4 * e, 4), 8192 + 2048 * e)]
        o += [Wait(lg="all"), "s_barrier"]
        o += ["ds_read_b128 %s, %s offset:%d" % (v(PK + 4 * g, 4), vKR, 8192 + 1024 * g) for g in range(2)]
        o += self.poll_issue(vPOLLK, WS_FLAG + F_V * 0x8000)
        return o

    def pass1(self, u, early):
        q = v(PK + 4 * u, 4)
        K = lambda t: a_(KA + 4 * t, 4)
        bufs = [S0, S1, S2]
        mx = [v(TMP + 4), v(TMP + 5)]
        o = [mfma(v(MM, 16), K(u + 8), q, "0"), mfma(v(S0, 16), K(u), q, "0"), mfma(v(S1, 16), K(u + 1), q, "0")]
        o += early
        o += [mfma(v(S2, 16), K(u + 2), q, "0")]
        o += ["v_cndmask_b32 %s, %s, %s, %s" % (v(MM + i), v(S0 + i), v(MM + i), sp(MASK0 + 2 * i)) for i in range(16)]

        def mxs(b, first):
            r = []
            for d in range(8):
                if first and d < 2:
                    r.append("v_max_f32 %s, %s, %s" % (mx[d % 2], v(b + 2 * d), v(b + 2 * d + 1)))
                else:
                    r.append("v_max3_f32 %s, %s, %s, %s" % (mx[d % 2], v(b + 2 * d), v(b + 2 * d + 1), mx[d % 2]))
            return r
        o += [mfma(v(S0, 16), K(u + 3), q, "0")]
        o += mxs(MM, True)
        for j in range(1, 8):
            o += mxs(bufs[j % 3], False)
            if j + 3 <= 7:
                o += [mfma(v(bufs[j % 3], 16), K(u + j + 3), q, "0")]
        o += ["v_max_f32 %s, %s, %s" % (mx[0], mx[0], mx[1]), "v_mov_b32 %s, %s" % (mx[1], mx[0]),
              "v_permlane32_swap_b32 %s, %s" % (mx[0], mx[1]),
              "v_max_f32 %s, %s, %s" % (mx[0], mx[0], mx[1])]
        o += ["v_sub_f32 %s, 0, %s" % (v(NEGM + i), mx[0]) for i in range(16)]
        return o

    def pass2(self, u, lag, extra):
        q = v(PK + 4 * u, 4)
        K = lambda t: a_(KA + 4 * t, 4)
        V = lambda t, f: a_(VA + 8 * t + 4 * f, 4)
        sb = lambda j: (S0, S1)[j % 2]
        pv = []
        PD, PF = PP, PP + 8
        pv += [(0, V(u + 8, f), v(PD + 4 * f, 4)) for f in range(2)]
        pv += [(0, V(u, f), v(PF + 4 * f, 4)) for f in range(2)]
        for j in range(1, 8):
            pv += [(j, V(u + j, f), v(PP + 8 + 8 * j + 4 * f, 4)) for f in range(2)]
        npv = 0
        o = []
        for j in range(8):
            ms = []
            if j < 7:
                ms.append(mfma(v(sb(j + 1), 16), K(u + j + 1), q, v(NEGM, 16)))
            if j >= lag:
                left = 8 - j
                avail = [x for x in pv[npv:] if x[0] < j]
                take = min(len(avail), 4)
                for x in avail[:take]:
                    ms.append(mfma(v(OO, 16), x[1], x[2], "0" if npv == 0 else None))
                    npv += 1
            if j == 0:
                w = ["v_add_f32 %s, %s, %s" % (v(MM + i), v(NEGM), v(MM + i)) for i in range(16)]
                b, dst = MM, PF
            else:
                w = []
                b, dst = sb(j), PP + 8 + 8 * j
            for d in range(8):
                w += ["v_exp_f32 %s, %s" % (v(b + 2 * d), v(b + 2 * d)), "v_exp_f32 %s, %s" % (v(b + 2 * d + 1), v(b + 2 * d + 1))]
                if d > 0:
                    w += ["v_cvt_pk_bf16_f32 %s, %s, %s" % (v(dst + d - 1), v(b + 2 * d - 2), v(b + 2 * d - 1))]
            tailw = ["v_cvt_pk_bf16_f32 %s, %s, %s" % (v(dst + 7), v(b + 14), v(b + 15))]
            if j == 0:
                w += ["v_and_b32 %s, %s, %s" % (v(PD), v(PM), v(PF))] + tailw
                w += ["v_and_b32 %s, %s, %s" % (v(PD + d), v(PM + d), v(PF + d)) for d in range(1, 8)]
                w += ["v_xor_b32 %s, %s, %s" % (v(PF + d), v(PD + d), v(PF + d)) for d in range(8)]
                tailw = []
            o += extra.get(j, [])
            k = max(8, 40 // max(len(ms), 1))
            o += weave(ms, w, k=k) if ms else flat(w)
            o += tailw
        for x in pv[npv:]:
            o.append(mfma(v(OO, 16), x[1], x[2]))
        return o

    def attn_fin(self, u):
        t = v(TMP + 6)
        o = ["v_rcp_f32 %s, %s" % (t, v(OO + 8))]
        o += ["v_mul_f32 %s, %s, %s" % (v(OO + i), t, v(OO + i)) for i in range(8)]
        o += ["v_cvt_pk_bf16_f32 %s, %s, %s" % (v(TMP + d), v(OO + 2 * d), v(OO + 2 * d + 1)) for d in range(4)]
        if u == 1:
            o += ["s_add_u32 %s, %s, 0x8000" % (sOST, sOST)]
        o += [I("buffer_store_dwordx4 %s, %s, %s, %s offen sc1" % (v(TMP, 4), vL16, sWS, sOST), "ost%d" % u)]
        return o

    def v_dma(self):
        o = []
        for pi in range(4):
            if pi % 2 == 0:
                o += ["s_mul_i32 s3, %s, 10240" % sWAVE, "s_add_u32 m0, s3, %d" % (L_VL + pi * 2048)]
            for k in range(2):
                o += [I("buffer_load_dwordx4 %s, %s, s%d offen offset:%d sc1 lds" % (vL16, sWS, sVO[pi], (pi % 2) * 2048 + 1024 * k),
                        "vd%d" % (pi // 2))]
        return o

    def v_read(self, half):
        o = [Wait(vm="vd%d" % half), "s_mov_b64 exec, %s" % sHALF]
        o += ["ds_read_b128 %s, %s offset:%d" % (a_(VA + 32 * half + 4 * g, 4), vVR, 4096 * half + 512 * g) for g in range(8)]
        o += ["s_mov_b64 exec, -1"]
        return o

    def relayout_dma(self):
        o = ["s_lshl_b32 %s, %s, 11" % (sT0, sWAVE)]
        for k, (ptr, size, regs, so) in enumerate(((pG, 512 * 3584, vGUD, sGUS), (pU, 512 * 3584, vGUD, sGUS),
                                                   (pD, 1792 * 1024, vWOD, sDS))):
            o += self.srd(ptr, size) + ["s_add_u32 m0, %s, %d" % (sT0, L_RL + 8192 * k)]
            o += [I("buffer_load_dwordx4 %s, %s, %s offen lds" % (v(regs[0]), sW, so), "rl"),
                  I("buffer_load_dwordx4 %s, %s, %s offen offset:1024 lds" % (v(regs[1]), sW, so), "rl")]
        return o

    def wo_dma(self):
        groups = []
        for g in range(4):
            o = []
            if g == 0:
                o += self.srd(pWO, 512 * 1024) + ["s_lshl_b32 %s, %s, 17" % (sT1, sWAVE), "s_lshl_b32 %s, %s, 14" % (sT2, sWAVE)]
            else:
                o += ["s_add_u32 %s, %s, 0x8000" % (sT1, sT1)]
            o += ["s_add_u32 m0, %s, %d" % (sT2, 4096 * g)]
            o += [I("buffer_load_dwordx4 %s, %s, %s offen offset:%d lds" % (v(vWOD[i]), sW, sT1, 1024 * i), "wo") for i in range(4)]
            groups.append(o)
        return groups

    XRES = 20

    def attention(self):
        p = self.p
        o = []
        o += self.pass1(0, [])
        o += self.stamp("p1A")
        o += self.poll_check(vPOLLK, WS_FLAG + F_V * 0x8000, 0xf, "v")
        o += self.v_dma()
        lag = p["lagA"]
        wo = self.wo_dma()
        xres = [I("buffer_load_dwordx4 %s, %s, %s, 0 offen" % (v(self.XRES, 4), vXRES, sX)),
                "s_mov_b32 s3, 0x8000",
                I("buffer_load_dwordx4 %s, %s, %s, s3 offen" % (v(self.XRES + 4, 4), vXRES, sX))]
        ex = {lag - 1: self.v_read(0), lag + 1: self.v_read(1), 6: wo[0], 7: wo[1]}
        o += self.pass2(0, lag, ex)
        o += self.stamp("attA")
        o += self.pass1(1, self.attn_fin(0))
        ex = {0: wo[2], 1: wo[3], 2: xres + self.relayout_dma(),
              3: [Wait(vm="ost0"), "s_barrier"] + self.flag_store(WS_FLAG + F_OA * 0x8000)}
        o += self.pass2(1, 1, ex)
        o += self.attn_fin(1)
        self.late = True
        o += self.stamp("attB")
        return o

    WOF, OF, ACC3, RED = 64, 128, 192, 224
    vPOLLO, vRDW, vRDR, vHST, vSTW, vPOLLH, vPOLLR, vCSD, vSTR, vPOLLG, vFLAGG, vCSR, vRD, vTR2 = \
        ["v%d" % i for i in range(2, 16)]

    def setup3(self):
        t = [v(TMP + i) for i in range(4, 8)] + [v(PK + i) for i in range(8)]
        lane, h, r32, oc, r8, oob = t[0], t[1], t[2], t[3], t[4], t[5]
        x, y = t[6], t[7]
        o = ["v_lshrrev_b32 %s, 4, %s" % (lane, vL16), "v_lshrrev_b32 %s, 5, %s" % (h, lane),
             "v_and_b32 %s, 31, %s" % (r32, lane), "v_lshrrev_b32 %s, 3, %s" % (oc, lane),
             "v_and_b32 %s, 7, %s" % (r8, lane), "v_mov_b32 %s, 0x%x" % (oob, OOB)]
        o += ["s_lshl_b32 s3, %s, 2" % sRB, "s_add_u32 s3, s3, %s" % sWAVE, "s_lshl_b32 s3, s3, 1",
              "v_add_lshl_u32 %s, s3, %s, 7" % (x, lane), "v_cmp_gt_u32 vcc, 2, %s" % lane,
              "v_cndmask_b32 %s, %s, %s, vcc" % (self.vPOLLO, oob, x)]
        return o, t

    def setup3b(self, t):
        lane, h, r32, oc, r8, oob = t[0], t[1], t[2], t[3], t[4], t[5]
        x, y = t[6], t[7]
        o = []
        o += ["v_lshlrev_b32 %s, 7, %s" % (x, h), "v_xor_b32 %s, %s, %s" % (x, x, vL16),
              "s_lshl_b32 s3, %s, 13" % sWAVE, "s_add_u32 s3, s3, %d" % L_RED, "v_add_u32 %s, s3, %s" % (self.vRDW, x)]
        o += ["s_lshl_b32 s3, %s, 3" % sWAVE, "v_add_u32 %s, s3, %s" % (x, r8),
              "v_and_b32 %s, 1, %s" % (y, oc), "v_lshl_add_u32 %s, %s, 5, %s" % (self.vHST, y, x),
              "v_lshlrev_b32 %s, 4, %s" % (self.vHST, self.vHST),
              "v_lshlrev_b32 %s, 11, %s" % (self.vRDR, y), "v_lshl_add_u32 %s, %s, 12, %s" % (self.vRDR, h, self.vRDR),
              "v_lshrrev_b32 %s, 1, %s" % (y, oc), "v_lshl_add_u32 %s, %s, 10, %s" % (self.vHST, y, self.vHST),
              "v_and_b32 %s, 1, %s" % (y, y), "v_mul_u32_u24 %s, 40, %s" % (y, y), "v_xor_b32 %s, %s, %s" % (x, x, y),
              "v_lshl_add_u32 %s, %s, 4, %s" % (self.vRDR, x, self.vRDR),
              "v_add_u32 %s, %d, %s" % (self.vRDR, L_RED, self.vRDR)]
        o += ["v_lshlrev_b32 %s, 2, %s" % (x, r32), "v_lshl_add_u32 %s, %s, 6, %s" % (x, h, x),
              "v_cmp_gt_u32 vcc, 16, %s" % r32, "v_cndmask_b32 %s, %s, %s, vcc" % (self.vSTW, oob, x),
              "v_and_b32 %s, 3, %s" % (x, oc), "v_lshlrev_b32 %s, 7, %s" % (x, x), "v_lshl_add_u32 %s, %s, 6, %s" % (x, h, x),
              "v_lshl_add_u32 %s, %s, 2, %s" % (self.vSTR, r8, x)]
        o += ["s_lshr_b32 s3, %s, 1" % sWAVE, "s_lshl_b32 %s, %s, 1" % (sT0, sC), "s_add_u32 s3, s3, %s" % sT0,
              "s_lshl_b32 s3, s3, 10", "s_and_b32 %s, %s, 1" % (sT0, sWAVE), "s_lshl_b32 %s, %s, 15" % (sT0, sT0),
              "s_add_u32 s3, s3, %s" % sT0, "v_lshl_add_u32 %s, %s, 7, s3" % (x, lane),
              "v_cmp_gt_u32 vcc, 8, %s" % lane, "v_cndmask_b32 %s, %s, %s, vcc" % (self.vPOLLH, oob, x)]
        o += ["s_lshl_b32 s3, %s, 2" % sC, "s_add_u32 s3, s3, %s" % sWAVE, "s_lshl_b32 s3, s3, 3",
              "s_and_b32 %s, %s, 1" % (sT0, sRB), "s_add_u32 s3, s3, %s" % sT0, "s_lshl_b32 s3, s3, 1",
              "v_and_b32 %s, 6, %s" % (x, lane), "v_add3_u32 %s, %s, %s, s3" % (x, x, lane),
              "v_lshlrev_b32 %s, 7, %s" % (x, x), "v_cndmask_b32 %s, %s, %s, vcc" % (self.vPOLLG, oob, x)]
        o += ["s_lshl_b32 s3, %s, 4" % sC, "s_add_u32 s3, s3, %s" % sJ16, "s_lshl_b32 s3, s3, 2",
              "s_add_u32 s3, s3, %s" % sWAVE, "s_lshl_b32 s3, s3, 7", "v_mov_b32 %s, s3" % x,
              "v_cmp_eq_u32 vcc, 0, %s" % lane, "v_cndmask_b32 %s, %s, %s, vcc" % (self.vFLAGG, oob, x)]
        o += ["s_mul_i32 s3, %s, 7" % sJ16, "s_lshr_b32 %s, s3, 2" % sT0, "s_add_u32 s3, s3, 6", "s_lshr_b32 s3, s3, 2",
              "v_lshrrev_b32 %s, 1, %s" % (x, lane), "v_add_u32 %s, %s, %s" % (x, sT0, x), "v_min_u32 %s, s3, %s" % (x, x),
              "v_and_b32 %s, 1, %s" % (y, lane), "v_mul_u32_u24 %s, 28, %s" % (y, y),
              "s_mul_i32 s3, %s, 56" % sWAVE, "v_add3_u32 %s, %s, %s, s3" % (x, x, y),
              "s_add_u32 s3, s3, %s" % sJ8, "s_sub_u32 s3, s3, 48", "v_lshl_add_u32 %s, %s, 3, s3" % (y, lane),
              "v_cmp_gt_u32 vcc, 6, %s" % lane, "v_cndmask_b32 %s, %s, %s, vcc" % (x, y, x),
              "v_lshlrev_b32 %s, 7, %s" % (x, x),
              "v_cmp_gt_u32 vcc, 13, %s" % lane, "v_cndmask_b32 %s, %s, %s, vcc" % (self.vPOLLR, oob, x)]
        o += ["s_mul_i32 s3, %s, 7936" % sWAVE, "s_sub_u32 s3, 32768, s3", "v_lshl_add_u32 %s, %s, 2, s3" % (self.vCSD, lane),
              "v_lshlrev_b32 %s, 9, %s" % (x, h), "v_lshl_add_u32 %s, %s, 2, %s" % (x, r32, x),
              "v_add_u32 %s, 32768, %s" % (self.vCSR, x)]
        return o

    def wo_read(self):
        o = ["s_lshl_b32 s3, %s, 14" % sWAVE, "v_add_u32 %s, s3, %s" % (self.vRD, vTR),
             "v_xor_b32 %s, 64, %s" % (self.vTR2, self.vRD), Wait(vm="wo")]
        for kt in range(8):
            for nt in range(2):
                r = self.WOF + 8 * kt + 4 * nt
                for tr in range(2):
                    o += ["ds_read_b64_tr_b16 %s, %s offset:%d" % (v(r + 2 * tr, 2), (self.vRD, self.vTR2)[nt], kt * 2048 + tr * 1024)]
        return o

    def relayout(self, t):
        lane, h, r32, oc, r8, oob = t[0], t[1], t[2], t[3], t[4], t[5]
        x, y = t[6], t[7]
        B = self.RED
        o = ["v_bfe_u32 %s, %s, 2, 2" % (x, lane), "v_lshl_add_u32 %s, %s, 3, %s" % (x, h, x), "v_lshlrev_b32 %s, 7, %s" % (x, x),
             "v_bfe_u32 %s, %s, 4, 1" % (y, lane), "v_lshl_add_u32 %s, %s, 13, %s" % (x, y, x),
             "v_and_b32 %s, 1, %s" % (y, oc), "s_lshr_b32 s3, %s, 1" % sWAVE, "v_xor_b32 %s, s3, %s" % (y, y),
             "v_lshl_add_u32 %s, %s, 6, %s" % (x, y, x), "v_and_b32 %s, 3, %s" % (y, lane),
             "v_lshl_add_u32 %s, %s, 3, %s" % (x, y, x),
             "s_and_b32 s3, %s, 1" % sWAVE, "s_lshl_b32 s3, s3, 5", "s_add_u32 s3, s3, %d" % L_RL,
             "v_add_u32 %s, s3, %s" % (x, x),
             "s_lshl_b32 s3, %s, 11" % sWAVE, "s_add_u32 s3, s3, %d" % (L_RL + 16384),
             "v_add_u32 %s, s3, %s" % (self.vRD, vTR), "v_xor_b32 %s, 64, %s" % (self.vTR2, self.vRD)]
        o += ["s_mul_i32 %s, %s, 2341" % (sT0, sQ), "s_lshr_b32 %s, %s, 16" % (sT0, sT0),
              "s_mul_i32 s3, %s, 28" % sT0, "s_sub_u32 s3, %s, s3" % sQ,
              "s_lshl_b32 s3, s3, 2", "s_add_u32 s3, s3, %s" % sWAVE, "s_mul_i32 s3, s3, %d" % TILE,
              "s_add_u32 s3, s3, 0x%x" % WS_WGU,
              "s_lshl_b32 %s, %s, 12" % (sT1, sT0), "s_add_u32 %s, %s, s3" % (sT1, sT1),
              "s_lshl_b32 %s, %s, 7" % (sT0, sT0), "s_add_u32 %s, %s, s3" % (sT0, sT0),
              "s_add_u32 %s, %s, 32768" % (sT0, sT0),
              "s_mul_i32 s3, %s, 112" % sJ8, "s_lshl_b32 %s, %s, 2" % (sT2, sRB), "s_add_u32 s3, s3, %s" % sT2,
              "s_add_u32 s3, s3, %s" % sWAVE, "s_lshl_b32 s3, s3, 11", "s_add_u32 %s, s3, 0x%x" % (sT2, WS_WD),
              "s_cmp_lt_u32 %s, 224" % sQ]
        o += ["s_cselect_b32 %s, %s, 0x%x" % (s, s, OOB) for s in (sT0, sT1, sT2)]
        o += [Wait(vm="rl", lg="all"), "s_barrier"]
        for ks in range(4):
            o += ["ds_read_b64_tr_b16 %s, %s offset:%d" % (v(B + 4 * ks + 2 * tr, 2), x, ks * 2048 + tr * 512) for tr in range(2)]
        for nt in range(2):
            o += ["ds_read_b64_tr_b16 %s, %s offset:%d" % (v(B + 16 + 4 * nt + 2 * tr, 2), (self.vRD, self.vTR2)[nt], tr * 1024)
                  for tr in range(2)]
        C4 = AEXT - 2
        for ks in range(4):
            o += [msum(C4, v(B + 4 * ks, 4), ks == 0),
                  I("buffer_store_dwordx4 %s, %s, %s, %s offen offset:%d sc1" % (v(B + 4 * ks, 4), vL16, sWS, sT1, 1024 * ks), "rst")]
        o += [I("buffer_store_dwordx4 %s, %s, %s, %s offen offset:%d sc1" % (v(B + 16 + 4 * nt, 4), vL16, sWS, sT2, 1024 * nt), "rst")
              for nt in range(2)]
        o += ["v_lshlrev_b32 %s, 2, %s" % (x, lane), "v_cmp_gt_u32 vcc, 32, %s" % lane,
              "v_cndmask_b32 %s, %s, %s, vcc" % (x, v(TMP + 3), x) if False else "v_cndmask_b32 %s, %s, %s, vcc" % (x, t[8], x),
              "v_permlane32_swap_b32 %s, %s" % (v(C4), v(C4 + 1)),
              "v_add_f32 %s, %s, %s" % (v(C4), v(C4), v(C4 + 1)),
              I("buffer_store_dword %s, %s, %s, %s offen sc1" % (v(C4), x, sWS, sT0), "rst")]
        return ["v_mov_b32 %s, 0x40000000" % t[8]] + o

    def o_load(self, s):
        o = ["s_lshl_b32 s3, %s, 3" % sRB, "s_add_u32 s3, s3, %s" % sWAVE, "s_lshl_b32 s3, s3, 13",
             "s_add_u32 s3, s3, 0x%x" % (WS_O + s * 0x8000)]
        for kt in range(8):
            if kt == 4:
                o += ["s_add_u32 s3, s3, 4096"]
            o += [I("buffer_load_dwordx4 %s, %s, %s, s3 offen offset:%d sc1" % (v(self.OF + 32 * s + 4 * kt, 4), vL16, sWS, 1024 * (kt % 4)))]
        return o

    def unpack_res(self, s, dst):
        o = []
        for d in range(4):
            o += ["v_lshlrev_b32 %s, 16, %s" % (v(dst + 2 * d), v(self.XRES + 4 * s + d)),
                  "v_and_b32 %s, 0xffff0000, %s" % (v(dst + 2 * d + 1), v(self.XRES + 4 * s + d))]
        return o

    def red_write(self, accs, vaddr):
        return [I("ds_write_b128 %s, %s offset:%d" % (vaddr, accs(q), 1024 * q), "red") for q in range(8)]

    def red_read(self, buf, vaddr):
        return ["ds_read_b128 %s, %s offset:%d" % (v(buf + 8 * s + 4 * k, 4), vaddr, 8192 * s + 1024 * k)
                for s in range(4) for k in range(2)]

    def red_sum(self, buf, dst):
        return ["v_add_f32 %s, %s, %s" % (v(dst + i), v(dst + i), v(buf + 8 * s + i)) for s in range(4) for i in range(8)]

    def p3(self, s):
        ms = [mfma(v(self.ACC3 + 16 * nt, 16), v(self.WOF + 8 * kt + 4 * nt, 4), v(self.OF + 32 * s + 4 * kt, 4), "0" if kt == 0 else None)
              for kt in range(8) for nt in range(2)]
        pre = self.unpack_res(s, PK)
        pre += ["s_lshl_b32 %s, %s, 16" % (sT0, sRB), "s_lshl_b32 s3, %s, 12" % sJ8, "s_add_u32 %s, %s, s3" % (sT0, sT0),
                "s_add_u32 %s, %s, 0x%x" % (sT0, sT0, WS_H + s * 0x8000),
                "s_lshl_b32 %s, %s, 13" % (sT1, sRB), "s_lshl_b32 s3, %s, 9" % sJ8, "s_add_u32 %s, %s, s3" % (sT1, sT1),
                "s_lshl_b32 s3, %s, 7" % sWAVE, "s_add_u32 %s, %s, s3" % (sT1, sT1),
                "s_add_u32 %s, %s, 0x%x" % (sT1, sT1, WS_ST + s * 4096),
                "v_mov_b32 %s, 0" % v(TMP), "v_mov_b32 %s, 0" % v(TMP + 1), "v_mov_b32 %s, 0x3f803f80" % v(TMP + 2)]
        o = pre + ms
        o += self.red_write(lambda q: v(self.ACC3 + 4 * q, 4), self.vRDW)
        o += [Wait(lg="red"), "s_barrier"]
        o += self.red_read(self.RED, self.vRDR) + self.red_sum(self.RED, PK)
        H = self.XRES + 4 * s
        o += ["v_cvt_pk_bf16_f32 %s, %s, %s" % (v(H + d), v(PK + 2 * d), v(PK + 2 * d + 1)) for d in range(4)]
        o += [I("buffer_store_dwordx4 %s, %s, %s, %s offen sc1" % (v(H, 4), self.vHST, sWS, sT0), "hst%d" % s)]
        for d in range(4):
            o += ["v_dot2c_f32_bf16 %s, %s, %s" % (v(TMP), v(H + d), v(TMP + 2)),
                  "v_dot2c_f32_bf16 %s, %s, %s" % (v(TMP + 1), v(H + d), v(H + d))]
        a, b = v(TMP), v(TMP + 1)
        o += ["v_permlane32_swap_b32 %s, %s" % (a, b), "v_add_f32 %s, %s, %s" % (a, a, b), "v_mov_b32 %s, %s" % (b, a),
              "v_permlane16_swap_b32 %s, %s" % (a, b), "v_add_f32 %s, %s, %s" % (a, a, b),
              "v_add_f32_dpp %s, %s, %s row_ror:8 row_mask:0xf bank_mask:0xf" % (a, a, a),
              I("buffer_store_dword %s, %s, %s, %s offen sc1" % (a, self.vSTW, sWS, sT1), "hst%d" % s)]
        return o

    sTILE, sW8K, sWDO, sGST, sGL0, sGL1 = "s34", "s35", "s38", "s39", "s40", "s41"

    def w_dma(self, t):
        base = (t % 4) * TILE
        tag = "w%d" % t
        o = ["s_lshl_b32 s3, %s, 8" % sWAVE, "s_add_u32 m0, s3, %d" % (base + 32768),
             I("buffer_load_dword %s, %s, %s offen sc1 lds" % (self.vCSD, sWS, self.sTILE), tag)]
        for hf in range(2):
            o += ["s_add_u32 m0, %s, %d" % (self.sW8K, base + 4096 * hf)]
            if hf:
                o += ["s_add_u32 %s, %s, 4096" % (self.sTILE, self.sTILE)]
            o += [I("buffer_load_dwordx4 %s, %s, %s offen offset:%d sc1 lds" % (vL16, sWS, self.sTILE, 1024 * i), tag) for i in range(4)]
        o += ["s_add_u32 %s, %s, %d" % (self.sTILE, self.sTILE, TILE - 4096)]
        return o

    def wd_loads(self):
        o = []
        for n in range(56):
            g = [I("buffer_load_dwordx4 %s, %s, %s, %s offen offset:%d sc1" % (a_(4 * n, 4), vL16, sWS, self.sWDO, 1024 * (n % 4)))]
            if n % 4 == 3:
                g += ["s_add_u32 %s, %s, 4096" % (self.sWDO, self.sWDO)]
            o.append(g)
        return o

    def middle(self):
        o = []
        s3, t = self.setup3()
        o += s3 + self.poll_issue(self.vPOLLO, WS_FLAG + F_OA * 0x8000)
        o += self.wo_read()
        o += self.relayout(t)
        o += [Wait(vm="ost1"), "s_barrier"] + self.flag_store(WS_FLAG + F_OB * 0x8000)
        o += self.stamp("flagOB")
        o += self.poll_check(self.vPOLLO, WS_FLAG + F_OA * 0x8000, 0x3, "oa")
        o += self.o_load(0)
        o += self.setup3b(t)
        o += ["s_mul_i32 %s, %s, %d" % (self.sTILE, sJ16, 7 * TILE), "s_lshl_b32 %s, %s, 13" % (self.sW8K, sWAVE),
              "s_add_u32 %s, %s, %s" % (self.sTILE, self.sTILE, self.sW8K),
              "s_add_u32 %s, %s, 0x%x" % (self.sTILE, self.sTILE, WS_WGU),
              "s_lshl_b32 s3, %s, 2" % sJ8, "s_add_u32 s3, s3, %s" % sWAVE, "s_mul_i32 %s, s3, %d" % (self.sWDO, 28 * 2048),
              "s_add_u32 %s, %s, 0x%x" % (self.sWDO, self.sWDO, WS_WD),
              "s_lshl_b32 s3, %s, 2" % sC, "s_add_u32 s3, s3, %s" % sWAVE, "s_mul_i32 %s, s3, 112" % self.sGST,
              "s_lshr_b32 s3, %s, 2" % sJ16, "s_mul_i32 s3, s3, 28", "s_add_u32 %s, %s, s3" % (self.sGST, self.sGST),
              "s_and_b32 s3, %s, 3" % sJ16, "s_add_u32 %s, %s, s3" % (self.sGST, self.sGST),
              "s_lshl_b32 %s, %s, 10" % (self.sGST, self.sGST), "s_add_u32 %s, %s, 0x%x" % (self.sGST, self.sGST, WS_G),
              "s_lshl_b32 s3, %s, 3" % sRB, "s_add_u32 s3, s3, %s" % sWAVE, "s_mul_i32 s3, s3, %d" % (28 * 1024),
              "s_add_u32 %s, s3, 0x%x" % (self.sGL0, WS_G), "s_add_u32 %s, s3, 0x%x" % (self.sGL1, WS_G + 112 * 1024)]
        o += [Wait(vm="rst"), "s_barrier"] + self.flag_store(WS_FLAG + F_R * 0x8000)
        o += self.poll_issue(self.vPOLLO, WS_FLAG + F_OB * 0x8000)
        o += self.p3(0)
        o += self.stamp("p3A")
        o += self.poll_check(self.vPOLLO, WS_FLAG + F_OB * 0x8000, 0x3, "ob")
        o += self.stamp("pollOB")
        o += self.o_load(1)
        o += self.poll_issue(self.vPOLLR, WS_FLAG + F_R * 0x8000)
        o += [Wait(vm="hst0"), "s_barrier"] + self.flag_store(WS_FLAG + F_HA * 0x8000)
        o += self.p3(1)
        o += self.stamp("p3B")
        o += self.poll_check(self.vPOLLR, WS_FLAG + F_R * 0x8000, 0x1fff, "r")
        o += self.w_dma(0)
        o += [Wait(vm="hst1", lg="all"), "s_barrier"] + self.flag_store(WS_FLAG + F_HB * 0x8000)
        o += self.stamp("flagHB")
        o += self.w_dma(1)
        o += self.poll_issue(self.vPOLLH, WS_FLAG + F_HA * 0x8000)
        o += self.poll_check(self.vPOLLH, WS_FLAG + F_HA * 0x8000, 0xff, "h")
        o += self.stamp("pollH")
        return o

    HF, ACX, RING = 128, 64, 96
    vSTD, vNRS = "v32", "v33"

    def glu_epi(self, t):
        acc = self.ACX + 16 * (t % 2)
        o = []
        o += ["v_mul_f32 %s, %s, %s" % (v(acc + i), self.vNRS, v(acc + i)) for i in range(8)]
        o += ["v_exp_f32 %s, %s" % (v(acc + i), v(acc + i)) for i in range(8)]
        o += ["v_fma_f32 %s, %s, %s, %s" % (v(acc + i), v(acc + i), self.vSTD, self.vSTD) for i in range(8)]
        o += ["v_rcp_f32 %s, %s" % (v(acc + i), v(acc + i)) for i in range(8)]
        o += ["v_mul_f32 %s, %s, %s" % (v(acc + i), v(acc + i), v(acc + 8 + i)) for i in range(8)]
        o += ["v_cvt_pk_bf16_f32 %s, %s, %s" % (v(PK + d), v(acc + 2 * d), v(acc + 2 * d + 1)) for d in range(4)]
        o += [I("buffer_store_dwordx4 %s, %s, %s, %s offen sc1" % (v(PK, 4), vL16, sWS, self.sGST), "gst%d" % t),
              "s_add_u32 %s, %s, 4096" % (self.sGST, self.sGST)]
        return o

    def glu_load(self, m):
        n, s = m // 2, m % 2
        so = (self.sGL0, self.sGL1)[s]
        o = [I("buffer_load_dwordx4 %s, %s, %s, %s offen offset:%d sc1" % (v(self.HF + 4 * (m % 32), 4), vL16, sWS, so, 1024 * (n % 4)))]
        if n % 4 == 3:
            o += ["s_add_u32 %s, %s, 4096" % (so, so)]
        return o

    def ffn(self):
        p = self.p
        gst = p["gstages"]
        gbase = lambda k: WS_GFLAG + k * 0x20000
        o = []
        o += ["s_lshl_b32 s3, %s, 2" % sC, "s_add_u32 s3, s3, %s" % sWAVE, "s_lshl_b32 %s, s3, 12" % sT1,
              "s_lshl_b32 s3, s3, 15", "s_add_u32 s3, s3, 0x%x" % WS_H, "s_add_u32 %s, %s, 0x%x" % (sT1, sT1, WS_ST)]
        for k in range(32):
            o += [I("buffer_load_dwordx4 %s, %s, %s, s3 offen offset:%d sc1" % (v(self.HF + 4 * k, 4), vL16, sWS, 1024 * (k % 4)))]
            if k % 4 == 3:
                o += ["s_add_u32 s3, s3, 4096"]
            if k == 15:
                o += [I("buffer_load_dword %s, %s, %s, %s offen offset:%d sc1" % (v(TMP + j), self.vSTR, sWS, sT1, 512 * j)) for j in range(8)]
        D = 7
        rd = lambda n: I("ds_read_b128 %s, %s offset:%d" % (v(self.RING + 4 * (n % 8), 4), self.vRD, 1024 * (n % 32)))

        def enter(t):
            return [Wait(vm="w%d" % t), "s_barrier", "v_add_u32 %s, %d, %s" % (self.vRD, (t % 4) * TILE, vL16),
                    "v_add_u32 %s, %d, %s" % (self.vTR2, (t % 4) * TILE, self.vCSR)]
        o += enter(0) + [rd(n) for n in range(D)]
        wd = self.wd_loads()
        stats = ["v_add_f32 %s, %s, %s" % (v(TMP + j), v(TMP + j), v(TMP + j + 4)) for j in range(4)]
        stats += ["v_add_f32 %s, %s, %s" % (v(TMP + j), v(TMP + j), v(TMP + j + 2)) for j in range(2)]
        stats += ["v_add_f32 %s, %s, %s" % (v(TMP), v(TMP), v(TMP + 1))]
        stats += self.stats_finish(v(TMP), v(TMP + 1), v(TMP + 2))
        stats += ["v_rsq_f32 %s, %s" % (self.vNRS, v(TMP + 1)), "v_sqrt_f32 %s, %s" % (self.vSTD, v(TMP + 1)),
                  "v_mul_f32 %s, %s, %s" % (self.vNRS, f2u(-LOG2E), self.vNRS)]
        CB = PK + 4
        nwd = 0
        nglu = 0
        for t in range(7):
            acc = v(self.ACX + 16 * (t % 2), 16)
            cs = ["ds_read2_b32 %s, %s offset0:0 offset1:32" % (v(CB, 2), self.vTR2),
                  "ds_read2_b32 %s, %s offset0:64 offset1:96" % (v(CB + 2, 2), self.vTR2)]
            cs2 = ["v_add_f32 %s, %s, %s" % (v(CB), v(CB), v(CB + 1)), "v_add_f32 %s, %s, %s" % (v(CB + 2), v(CB + 2), v(CB + 3)),
                   "v_add_f32 %s, %s, %s" % (v(CB), v(CB), v(CB + 2))] + self.split_hi_lo_A(v(CB), v(CB + 1))
            gaps = {k: [] for k in range(33)}
            gaps[0] += cs
            valu = flat(self.glu_epi(t - 1)) if t > 0 else flat(stats)
            k = 3 if t > 0 else 20
            while valu:
                n = 0
                while valu and n < 3:
                    x = valu.pop(0)
                    gaps[k].append(x)
                    n += 2 if x.mn in ("v_exp_f32", "v_rcp_f32") else 1
                k += 1
            gaps[28] += cs2[:4]
            gaps[29] += cs2[4:]
            bg = []
            if t in (0, 1):
                bg += [[x] for x in flat(self.w_dma(t + 2))] if t == 1 else []
            if t == 0:
                late = [[x] for x in flat(self.w_dma(2))]
                for i, g in enumerate(late):
                    gaps[16 + i] += g
            if t in (2, 3, 4):
                bg += [[x] for x in flat(self.w_dma(t + 2))]
            if 1 <= t <= 5:
                take = {1: 8, 2: 8, 3: 8, 4: 8, 5: 24}[t]
                bg += wd[nwd:nwd + take]
                nwd += take
            for i, g in enumerate(bg):
                gaps[min(1 + i * 31 // max(len(bg), 1), 31)] += g
            for si, tiles in enumerate(gst):
                if tiles[-1] + 2 == t:
                    gaps[16] += [Wait(vm="gst%d" % tiles[-1])] + self.flag_store(gbase(si), self.vFLAGG)
            if t == 5:
                gaps[12] += self.poll_issue(self.vPOLLG, gbase(0))
            if t == 6:
                gaps[0] += self.poll_check(self.vPOLLG, gbase(0), 0xff, "g0")
                lim = min(8 * len(gst[0]), 16)
                for m in range(lim):
                    gaps[1 + 2 * m] += self.glu_load(m)
                nglu = lim
            for k in range(32):
                n = 32 * t + k
                if k % 2 == 0:
                    o += [Wait(regs=[v(self.RING + 4 * ((n + 1) % 8), 4)])]
                o += [mfma(acc, v(self.RING + 4 * (n % 8), 4), v(self.HF + 4 * k, 4), "0" if k == 0 else None)]
                if n + D < 224:
                    if (n + D) % 32 == 0:
                        o += enter(t + 1)
                    o += [rd(n + D)]
                o += gaps[k]
            o += [mext(acc, v(AEXT, 2), v(BEXT, 2))] + gaps[32]
            if t in (0, 3, 6):
                o += self.stamp("tile%d" % t)
        assert nwd == 56
        accs = {(0, 0): a_(224, 16), (0, 1): a_(240, 16), (1, 0): v(self.RING, 16), (1, 1): v(self.RING + 16, 16)}
        stage_of = {}
        for si, tiles in enumerate(gst):
            for t in tiles:
                stage_of[t] = si
        gaps = {k: [] for k in range(112)}
        valu = flat(self.glu_epi(6))
        k = 2
        while valu:
            n = 0
            while valu and n < 4:
                x = valu.pop(0)
                gaps[k].append(x)
                n += 2 if x.mn in ("v_exp_f32", "v_rcp_f32") else 1
            k += 1
        for si, tiles in enumerate(gst):
            if tiles[-1] == 5:
                gaps[8] += [Wait(vm="gst5")] + self.flag_store(gbase(si), self.vFLAGG)
            if tiles[-1] == 6:
                gaps[40] += [Wait(vm="gst6")] + self.flag_store(gbase(si), self.vFLAGG)
        pol = p.get("gpoll", {1: (1, 16), 2: (36, 56), 3: (62, 80)})
        g = 0
        checked = 0
        for si, (gi, gc) in pol.items():
            gaps[gi] += self.poll_issue(self.vPOLLG, gbase(si))
        for m in range(nglu, 56):
            si = stage_of[m // 8]
            if si > checked:
                g = max(g, pol[si][1])
                gaps[g] += self.poll_check(self.vPOLLG, gbase(si), 0xff, "g%d" % si)
                checked = si
            g = max(g, 2 * (m - 32) + 1)
            assert g < 2 * m, (m, g)
            gaps[g] += self.glu_load(m)
            g += 1
        k = 0
        for n in range(28):
            for s in range(2):
                for nt in range(2):
                    o += [mfma(accs[(s, nt)], a_(8 * n + 4 * nt, 4), v(self.HF + 4 * ((2 * n + s) % 32), 4), "0" if n == 0 else None)]
                    o += gaps[k]
                    k += 1
        o += self.stamp("p5")
        o += ["v_subrev_u32 %s, %d, %s" % (self.vRD, L_RED, self.vRDW), "v_subrev_u32 %s, %d, %s" % (self.vTR2, L_RED, self.vRDR)]
        o += self.unpack_res(0, PK)
        o += self.red_write(lambda q: a_(224 + 4 * q, 4), self.vRD)
        o += self.red_write(lambda q: v(self.RING + 4 * q, 4), self.vRDW)
        o += self.unpack_res(1, TMP)
        o += [Wait(lg="red"), "s_barrier"]
        o += self.red_read(128, self.vTR2) + self.red_read(160, self.vRDR)
        for s, dst in ((0, PK), (1, TMP)):
            o += self.red_sum(128 + 32 * s, dst)
            o += ["v_cvt_pk_bf16_f32 %s, %s, %s" % (v(dst + d), v(dst + 2 * d), v(dst + 2 * d + 1)) for d in range(4)]
            if s:
                o += ["v_add_u32 %s, 0x8000, %s" % (vXRES, vXRES)]
            o += [I("global_store_dwordx4 %s, %s, %s" % (vXRES, v(dst, 4), sp(pOUT)))]
        o += self.stamp("out")
        return o

    def dump_stamps(self):
        if not self.p["stamps"]:
            return []
        o = ["s_waitcnt vmcnt(0)"] + self.stamp("end") + ["s_memrealtime s[4:5]", "s_waitcnt lgkmcnt(0)",
             "s_lshl_b32 s3, s2, 2", "s_add_u32 s3, s3, %s" % sWAVE, "s_lshl_b32 s3, s3, 7",
             "s_add_u32 s3, s3, 0x%x" % WS_STAMP, "v_mov_b32 v2, 0"]
        for i, (n, r) in enumerate(self.stamp_names):
            o += ["v_mov_b32 v3, s%d" % r, "buffer_store_dword v3, v2, %s, s3 offen offset:%d" % (sWS, 4 * i)]
        o += ["v_mov_b32 v3, s4", "buffer_store_dword v3, v2, %s, s3 offen offset:124" % sWS,
              "v_mov_b32 v3, %s" % sSPIN, "buffer_store_dword v3, v2, %s, s3 offen offset:120" % sWS]
        return o

    def build(self):
        body = self.prologue() + self.qkv() + self.attention() + self.middle() + self.ffn() + self.dump_stamps()
        lines, stats = finalize(body)
        head = [
            "; Fused block: x + attn(LN(x)) then + GLU(LN(.)), one persistent launch, 256 workgroups x 256 threads.",
            "; Generated by gen/gen.py (hand-scheduled; waits and wait states added by gen/asmlib.py).",
            "; @launch grid=(256,1,1) block=(256,1,1) lds=%d" % LDS_BYTES,
            '.amdgcn_target "amdgcn-amd-amdhsa--gfx950"', ".text", ".globl %s_kernel" % NAME, ".p2align 8",
            ".type %s_kernel,@function" % NAME, "%s_kernel:" % NAME]
        tail = ["L_end:", "s_endpgm"] + self.tail + [
            '.section .rodata,"a"', ".p2align 6", ".amdhsa_kernel %s_kernel" % NAME,
            "  .amdhsa_next_free_vgpr 512", "  .amdhsa_next_free_sgpr 102", "  .amdhsa_accum_offset 256",
            "  .amdhsa_group_segment_fixed_size 0", "  .amdhsa_kernarg_size 80", "  .amdhsa_user_sgpr_count 2",
            "  .amdhsa_user_sgpr_kernarg_segment_ptr 1", "  .amdhsa_system_sgpr_workgroup_id_x 1",
            ".end_amdhsa_kernel"]
        self.stats = stats
        self.nins = len(lines)
        return "\n".join(head + lines + tail) + "\n"


if __name__ == "__main__":
    g = Gen()
    s = g.build()
    path = sys.argv[1] if len(sys.argv) > 1 else "cdna_kernels/%s.s" % NAME
    open(path, "w").write(s)
    print("wrote", path, "lines", g.nins, g.stats)
```
